```python
import torch

def _softmax(x, axis=-1):
    return torch.softmax(x, dim=axis)
def _gelu(x):
    return torch.nn.functional.gelu(x, approximate="tanh")
def _silu(x):
    return torch.nn.functional.silu(x)
def _sigmoid(x):
    return torch.sigmoid(x)
def _layernorm(x, axis=-1, eps=1e-5):
    m = x.mean(dim=axis, keepdim=True)
    v = x.var(dim=axis, keepdim=True, unbiased=False)
    return (x - m) / torch.sqrt(v + eps)
def _scatter_add(tgt, idx, src, axis=0):
    return tgt.clone().index_add_(axis, idx, src)
def _segment_sum(src, seg, n):
    out = torch.zeros((n,) + src.shape[1:], dtype=src.dtype)
    return out.index_add_(0, seg, src)
def _pad(x, pw):
    flat = tuple(v for pair in reversed(pw) for v in pair)
    return torch.nn.functional.pad(x, flat)

kernel_name = 'standalone__gqa_block_cached__near_ridge'

def setup_inputs():

    _w = (lambda a: (lambda t: t.to(torch.bfloat16) if t.is_floating_point() else t)(torch.as_tensor(a)))
    B, Sq, D = 16, 32, 1024
    Hq, Hkv, Sk, Dh = 32, 4, 512, 128
    assert Hq % Hkv == 0, (Hq, Hkv)
    return {
        "x": _w((lambda *s: torch.randn(*s, dtype=torch.bfloat16) * 0.8)(B, Sq, D)),
        "k_cache": _w((lambda *s: torch.randn(*s, dtype=torch.bfloat16) * 0.8)(B, Hkv, Sk, Dh)),
        "v_cache": _w((lambda *s: torch.randn(*s, dtype=torch.bfloat16) * 0.05)(B, Hkv, Sk, Dh)),
        "wq": _w((lambda *s: torch.randn(*s, dtype=torch.bfloat16) * 0.8)(D, Hq * Dh) * (D ** -0.5)),
        "wo": _w((lambda *s: torch.randn(*s, dtype=torch.bfloat16) * 0.05)(Hq * Dh, D) * ((Hq * Dh) ** -0.5)),
    }

def reference(x, k_cache, v_cache, wq, wo):
    B, Sq, D = x.shape
    Hq, Dh = 32, 128
    Hkv = k_cache.shape[1]
    rep = Hq // Hkv
    q = (lambda x, *d: x.permute(*d))((x @ wq).reshape(B, Sq, Hq, Dh), 0, 2, 1, 3)
    k = (lambda x, n, axis: torch.repeat_interleave(x, n, dim=axis))(k_cache, rep, axis=1)
    v = (lambda x, n, axis: torch.repeat_interleave(x, n, dim=axis))(v_cache, rep, axis=1)
    scores = torch.einsum("bhqd,bhkd->bhqk", q, k) * (Dh ** -0.5)
    p = _softmax(scores, axis=-1)
    o = torch.einsum("bhqk,bhkd->bhqd", p, v)
    return (lambda x, *d: x.permute(*d))(o, 0, 2, 1, 3).reshape(B, Sq, Hq * Dh) @ wo
```

```python
import re

def regs(kind, lo, n=1):
    return [(kind, lo + i) for i in range(n)]

def rs(kind, lo, n=1):
    if kind == 'x':
        raise ValueError
    return f"{kind}{lo}" if n == 1 else f"{kind}[{lo}:{lo+n-1}]"

class R:
    def __init__(self, kind, lo, n=1):
        self.kind, self.lo, self.n = kind, lo, n
    def __str__(self): return rs(self.kind, self.lo, self.n)
    def set(self): return regs(self.kind, self.lo, self.n)
    def sub(self, off, n=1):
        assert 0 <= off and off + n <= self.n, (off, n, self.n)
        return R(self.kind, self.lo + off, n)
    def __getitem__(self, i):
        return self.sub(i, 1)

def V(lo, n=1): return R('v', lo, n)
def A(lo, n=1): return R('a', lo, n)
def S(lo, n=1): return R('s', lo, n)

def opset(x):
    if isinstance(x, R): return x.set()
    if isinstance(x, str):
        if x == 'vcc': return [('s', 106), ('s', 107)]
        if x == 'exec': return [('s', 126), ('s', 127)]
        if x == 'm0': return [('s', 124)]
        m = re.fullmatch(r'-?(?:abs\()?([vas])(\d+)\)?', x)
        if m: return [(m.group(1), int(m.group(2)))]
        m = re.fullmatch(r'-?([vas])\[(\d+):(\d+)\]', x)
        if m: return regs(m.group(1), int(m.group(2)), int(m.group(3)) - int(m.group(2)) + 1)
    return []

TRANS = ('v_exp_f32', 'v_log_f32', 'v_rcp_f32', 'v_rsq_f32', 'v_sqrt_f32', 'v_sin_f32', 'v_cos_f32')

class Ins:
    __slots__ = ('text', 'kind', 'w', 'r', 'c', 'passes', 'tag', 'wide')
    def __init__(self, text, kind, w=(), r=(), c=(), passes=0, tag=None, wide=False):
        self.text, self.kind = text, kind
        self.w, self.r, self.c = list(w), list(r), list(c)
        self.passes, self.tag, self.wide = passes, tag, wide

class Kernel:
    def __init__(self, name):
        self.name = name
        self.ins = []
        self.vmq = []
        self.lgq = []
        self.nlabel = 0
    def emit(self, i): self.ins.append(i)
    def raw(self, text, kind='salu', w=(), r=()):
        ww = [x for o in w for x in opset(o)]; rr = [x for o in r for x in opset(o)]
        self.emit(Ins(text, kind, ww, rr))
    def comment(self, text): self.emit(Ins("; " + text, 'comment'))
    def label(self, name): self.emit(Ins(name + ":", 'label'))
    def newlabel(self, base):
        self.nlabel += 1
        return f"{self.name}_{base}_{self.nlabel}"
    def s(self, op, dst, *src):
        ops = ([dst] if dst is not None else []) + list(src)
        w = opset(dst) if dst is not None else []
        r = [x for o in src for x in opset(o)]
        self.emit(Ins(f"{op} " + ", ".join(str(o) for o in ops), 'salu', w, r))
    def scmp(self, op, a, b):
        self.emit(Ins(f"{op} {a}, {b}", 'salu', [], opset(a) + opset(b)))
    def branch(self, op, label): self.emit(Ins(f"{op} {label}", 'branch'))
    def nop(self, n=0): self.emit(Ins(f"s_nop {n}", 'nop', passes=n + 1))
    def barrier(self): self.emit(Ins("s_barrier", 'salu'))
    def sload(self, dst, base, off):
        op = {1: 's_load_dword', 2: 's_load_dwordx2', 4: 's_load_dwordx4', 8: 's_load_dwordx8', 16: 's_load_dwordx16'}[dst.n]
        self.emit(Ins(f"{op} {dst}, {base}, {off}", 'smem', dst.set(), base.set()))
    def v(self, op, dst, *src, mods=""):
        kind = 'trans' if op in TRANS else 'valu'
        w = opset(dst); r = [x for o in src for x in opset(o)]
        if op in ('v_fmac_f32', 'v_writelane_b32'): r += opset(dst)
        if op.startswith('v_permlane'):
            kind = 'permlane'; w = opset(dst) + opset(src[0]); r = w[:]
        if op in ('v_readfirstlane_b32', 'v_readlane_b32'): kind = 'readlane'
        if op.startswith('v_cndmask') and len(src) == 2: r += opset('vcc')
        self.emit(Ins(f"{op} {dst}, " + ", ".join(str(o) for o in src) + (" " + mods if mods else ""), kind, w, r))
    def vcmp(self, op, dst, a, b):
        self.emit(Ins(f"{op} {dst}, {a}, {b}", 'valu', opset(dst), opset(a) + opset(b)))
    def mfma(self, d, a, b, c, shape='32x32x16'):
        passes = 8 if shape == '32x32x16' else 4
        self.emit(Ins(f"v_mfma_f32_{shape}_bf16 {d}, {a}, {b}, {c}", 'mfma', d.set(), a.set() + b.set(), opset(c), passes))
    def ds_read(self, dst, addr, off, tag, tr=False):
        assert 0 <= off <= 65535, off
        if tr: op = 'ds_read_b64_tr_b16'; assert dst.n == 2
        else: op = {1: 'ds_read_b32', 2: 'ds_read_b64', 4: 'ds_read_b128'}[dst.n]
        self.emit(Ins(f"{op} {dst}, {addr}" + (f" offset:{off}" if off else ""), 'dsr', dst.set(), addr.set(), tag=tag))
        self.lgq.append(tag)
    def ds_write(self, addr, src, off, tag):
        assert 0 <= off <= 65535, off
        op = {1: 'ds_write_b32', 2: 'ds_write_b64', 4: 'ds_write_b128'}[src.n]
        self.emit(Ins(f"{op} {addr}, {src}" + (f" offset:{off}" if off else ""), 'dsw', [], addr.set() + src.set(), tag=tag, wide=src.n > 2))
        self.lgq.append(tag)
    def buf_load(self, dst, voff, srd, soff, off, tag, flags=""):
        assert 0 <= off <= 4095
        op = {1: 'buffer_load_dword', 2: 'buffer_load_dwordx2', 4: 'buffer_load_dwordx4'}[dst.n]
        self.emit(Ins(f"{op} {dst}, {voff}, {srd}, {soff} offen" + (f" offset:{off}" if off else "") + (" " + flags if flags else ""),
                      'vmem', dst.set(), voff.set() + srd.set() + opset(soff), tag=tag))
        self.vmq.append(tag)
    def dma(self, voff, srd, soff, off, tag, flags=""):
        assert 0 <= off <= 4095
        self.emit(Ins(f"buffer_load_dwordx4 {voff}, {srd}, {soff} offen" + (f" offset:{off}" if off else "") + (" " + flags if flags else "") + " lds",
                      'dma', [], voff.set() + srd.set() + opset(soff) + opset('m0'), tag=tag))
        self.vmq.append(tag)
    def buf_store(self, src, voff, srd, soff, off, tag, flags=""):
        assert 0 <= off <= 4095
        op = {1: 'buffer_store_dword', 2: 'buffer_store_dwordx2', 4: 'buffer_store_dwordx4'}[src.n]
        self.emit(Ins(f"{op} {src}, {voff}, {srd}, {soff} offen" + (f" offset:{off}" if off else "") + (" " + flags if flags else ""),
                      'vmem', [], src.set() + voff.set() + srd.set() + opset(soff), tag=tag, wide=src.n > 2))
        self.vmq.append(tag)
    def vmem_raw(self, text, w=(), r=(), tag=None, wide=False):
        ww = [x for o in w for x in opset(o)]; rr = [x for o in r for x in opset(o)]
        self.emit(Ins(text, 'vmem', ww, rr, tag=tag, wide=wide))
        self.vmq.append(tag)
    def _count(self, q, tags):
        if not isinstance(tags, list): tags = [tags]
        last = -1
        for i, t in enumerate(q):
            if t in tags: last = i
        return last
    def wait(self, vm=None, lg=None):
        parts = []
        if vm is not None:
            last = len(self.vmq) - 1 if vm == 'all' else self._count(self.vmq, vm)
            if last < 0 and vm != 'all': raise RuntimeError(f"wait: vm tag {vm} not outstanding")
            if last >= 0:
                n = len(self.vmq) - 1 - last
                parts.append(f"vmcnt({min(n, 63)})")
                keep = min(n, 63)
                self.vmq = self.vmq[len(self.vmq) - keep:] if keep else []
        if lg is not None:
            last = len(self.lgq) - 1 if lg == 'all' else self._count(self.lgq, lg)
            if last >= 0:
                n = len(self.lgq) - 1 - last
                parts.append(f"lgkmcnt({min(n, 15)})")
                keep = min(n, 15)
                self.lgq = self.lgq[len(self.lgq) - keep:] if keep else []
        if parts: self.emit(Ins("s_waitcnt " + " ".join(parts), 'salu'))
    def wait_raw(self, text): self.emit(Ins("s_waitcnt " + text, 'salu'))
    def finalize(self, verbose=False):
        out = []
        npad = 0
        hist = []
        pos = 0
        W = 24
        def need(cur, prev):
            n = 0
            pw = set(prev.w); cw = set(cur.w); cr = set(cur.r); cc = set(cur.c)
            pk, ck = prev.kind, cur.kind
            valu_p = pk in ('valu', 'trans', 'permlane', 'readlane')
            valu_c = ck in ('valu', 'trans', 'permlane', 'readlane')
            pv = {x for x in pw if x[0] in 'va'}; ps = {x for x in pw if x[0] == 's'}
            if valu_p:
                if ck == 'mfma' and pv & (cr | cc): n = max(n, 2)
                if ck in ('vmem', 'dma') and ps & cr: n = max(n, 5)
                if valu_c and ps & cr: n = max(n, 2)
                if ck == 'readlane' and pv & cr: n = max(n, 1)
                if ck == 'readlane' and ps & cr: n = max(n, 4)
                if ck == 'permlane' and pv & cr: n = max(n, 2)
                if pk == 'trans' and valu_c and pv & cr: n = max(n, 1)
                if ck == 'salu' and ps & cr: n = max(n, 4)
                if ('s', 126) in ps or ('s', 127) in ps:
                    n = max(n, 5 if ck != 'salu' else 0)
            if pk == 'mfma':
                P = prev.passes
                if ck == 'mfma':
                    if pw & cc:
                        if set(prev.w) == cc and prev.passes == cur.passes: n = max(n, 0 if P >= 4 else 2)
                        else: n = max(n, {4: 6, 8: 10}[P])
                    if pw & cr: n = max(n, {4: 8, 8: 12}[P])
                    if pw & cw and not (pw & cc): n = max(n, {4: 8, 8: 12}[P])
                elif valu_c or ck in ('vmem', 'dma', 'dsr', 'dsw'):
                    if pw & (cr | cw): n = max(n, {4: 8, 8: 12}[P])
                    if valu_c and set(prev.c) & cw: n = max(n, {4: 3, 8: 7}[P])
            if pk == 'salu' and ('s', 124) in pw and ck in ('dma',): n = max(n, 1)
            if pk in ('vmem', 'dsw') and prev.wide:
                if set(prev.r) & cw and {x for x in cw if x[0] in 'va'}: n = max(n, 2)
            return n
        for ins in self.ins:
            if ins.kind in ('comment',):
                out.append(ins.text); continue
            if ins.kind == 'label':
                out.append(ins.text); continue
            req = 0
            for (p, ppos) in hist:
                d = pos - ppos - 1
                n = need(ins, p)
                if n > d: req = max(req, n - d)
            while req > 0:
                k = min(req, 16)
                out.append(f"s_nop {k-1}"); pos += k; req -= k; npad += 1
            out.append(ins.text)
            if ins.kind == 'nop':
                pos += ins.passes
            else:
                hist.append((ins, pos)); pos += 1
            hist = [(p, pp) for (p, pp) in hist if pos - pp <= W]
        if verbose: print(f"{self.name}: {len(self.ins)} instrs, {npad} hazard pads")
        return out

def descriptor(name, vgpr, accum, sgpr=96):
    return f""".section .rodata,"a"
.p2align 6
.amdhsa_kernel {name}
  .amdhsa_next_free_vgpr {vgpr}
  .amdhsa_next_free_sgpr {sgpr}
  .amdhsa_accum_offset {accum}
  .amdhsa_group_segment_fixed_size 0
  .amdhsa_kernarg_size 64
  .amdhsa_user_sgpr_count 2
  .amdhsa_user_sgpr_kernarg_segment_ptr 1
  .amdhsa_system_sgpr_workgroup_id_x 1
  .amdhsa_float_denorm_mode_32 3
.end_amdhsa_kernel
"""
def kernel_text(k, vgpr, accum, sgpr=96, verbose=True):
    body = k.finalize(verbose)
    t = f".text\n.globl {k.name}\n.p2align 8\n.type {k.name},@function\n{k.name}:\n"
    t += "\n".join(("" if (l.endswith(":") or l.startswith(";")) else "  ") + l for l in body) + "\n"
    t += descriptor(k.name, vgpr, accum, sgpr)
    return t
HEAD = '.amdgcn_target "amdgcn-amd-amdhsa--gfx950"\n'
```

```python
import sys, math, struct
from asmlib import *

KNAME = "standalone__gqa_block_cached__near_ridge_kernel"
WS_Q = 0
WS_O = 4 << 20
WS_P = 8 << 20
WS_F = 16 << 20
WS_E = 17 << 20
WS_STAMP = 32 << 20
SRD3 = "0x20000"
NONCE_C = 0x9E3779B1
POLL_MAX = 40000
OPT = dict(stamp=False, limit=9, sleep=1, prio_c=0, prio_l=0)

def f32bits(x): return "0x%08x" % struct.unpack("<I", struct.pack("<f", x))[0]

def interleave(k, mains, fillers, front=0):
    n = len(mains); m = len(fillers); fi = 0
    for i, f in enumerate(mains):
        f()
        frac = (i + 1) / n
        frac = min(1.0, frac * (1.0 + front))
        tgt = int(round(m * frac))
        while fi < tgt: fillers[fi](); fi += 1
    while fi < m: fillers[fi](); fi += 1

def merge(a, b):
    if not b: return list(a)
    if not a: return list(b)
    out = []; n = len(a); m = len(b); bi = 0
    for i, f in enumerate(a):
        out.append(f)
        while bi < (m * (i + 1)) // n: out.append(b[bi]); bi += 1
    return out + list(b[bi:])

sG, sBP, sU, sW = S(20), S(21), S(22), S(23)
sT, sT2, sT3 = S(24), S(25), S(26)
sA0, sA1 = S(27), S(28)
sL = S(29)
sPoll = S(30); sC = S(31)
srdX, srdW1, srdK, srdV = S(32, 4), S(36, 4), S(40, 4), S(44, 4)
srdQ, srdO, srdW3, srdP = S(48, 4), S(52, 4), S(56, 4), S(60, 4)
srdOut, srdF = S(64, 4), S(68, 4)
sM0, sOff = S(72), S(73)
sTmp = [S(74 + i) for i in range(8)]
sNonce, sAtom = S(82), S(83)
STAMP0 = 84

_nst = [0]
def stamp(k, who, idx):
    if OPT['stamp']:
        k.raw(f"s_memrealtime s[{STAMP0 + 2 * idx}:{STAMP0 + 2 * idx + 1}]", kind='smem', w=[f"s[{STAMP0 + 2 * idx}:{STAMP0 + 2 * idx + 1}]"])

def make_srd(k, dst, base, off, size):
    if off is None:
        k.s("s_mov_b32", dst[0], base[0]); k.s("s_mov_b32", dst[1], base[1])
    else:
        k.s("s_add_u32", dst[0], base[0], off); k.s("s_addc_u32", dst[1], base[1], 0)
    k.s("s_mov_b32", dst[2], size); k.s("s_mov_b32", dst[3], SRD3)

def tr_addr(k, dst, lane, colblk4_sreg_or_int, extra, tmp):
    t0, t1, t2, t3, t4 = tmp
    k.v("v_and_b32", t0, 15, lane)
    k.v("v_lshrrev_b32", t1, 2, t0)
    k.v("v_lshrrev_b32", t2, 5, lane)
    k.v("v_lshl_add_u32", t2, t2, 3, t1)
    k.v("v_lshlrev_b32", t2, 8, t2)
    k.v("v_bfe_u32", t4, t0, 1, 1)
    k.v("v_lshl_add_u32", t2, t4, 3, t2)
    k.v("v_and_b32", t3, 1, t0)
    k.v("v_bfe_u32", t4, lane, 4, 1)
    k.v("v_lshl_add_u32", t3, t4, 1, t3)
    k.v("v_lshlrev_b32", t1, 2, t1)
    for d, cb, ex in zip(dst, colblk4_sreg_or_int, extra):
        k.v("v_add_u32", t4, cb, t3)
        k.v("v_xor_b32", t4, t4, t1)
        k.v("v_lshl_add_u32", d, t4, 4, t2)
        if ex is not None: k.v("v_add_u32", d, ex, d)

PAIR = 16384
def build_schedule():
    steps = []
    for n in range(17): steps.append(('G1', n))
    steps.append(('QX', 0))
    for j in range(8): steps.append(('S', j))
    for i in range(9): steps.append(('PV', i))
    steps.append(('EX', 0)); steps.append(('OX', 0)); steps.append(('OY', 0))
    for n in range(17): steps.append(('G3', n))
    idx = {s: i for i, s in enumerate(steps)}
    U = []
    def add(kind, a, b, lds, free, need): U.append(dict(kind=kind, a=a, b=b, lds=lds, free=idx[free] if free else 0, need=idx[need]))
    for st in range(16):
        fr = ('G1', st - 3) if st >= 4 else None
        add('x', st, 0, (st % 4) * 8192, fr, ('G1', st))
        add('w1', st, 0, (2 + st % 4) * PAIR, fr, ('G1', st))
        add('w1', st, 1, (2 + st % 4) * PAIR + 8192, fr, ('G1', st))
    kpair = {0: 6, 1: 7, 2: 8, 3: 9, 4: 2, 5: 3, 6: 4, 7: 5}
    kfree = {4: ('G1', 13), 5: ('G1', 14), 6: ('G1', 15), 7: ('G1', 16)}
    for j in range(8):
        for kh in range(2): add('k', j, kh, kpair[j] * PAIR + kh * 8192, kfree.get(j), ('S', j))
    vpair = {0: 0, 1: 1, 2: 6, 3: 7, 4: 8, 5: 9, 6: 2, 7: 3}
    vfree = {0: ('G1', 14), 1: ('G1', 16), 2: ('S', 1), 3: ('S', 2), 4: ('S', 3), 5: ('S', 4), 6: ('S', 5), 7: ('S', 6)}
    for i in range(8):
        for kh in range(2): add('v', i, kh, vpair[i] * PAIR + kh * 8192, vfree[i], ('PV', i))
    w3pair = {0: 4, 1: 5, 2: 6, 3: 7, 4: 8, 5: 9, 6: 2, 7: 3}
    w3free = {0: ('S', 7), 1: ('PV', 0), 2: ('PV', 3), 3: ('PV', 4), 4: ('PV', 5), 5: ('PV', 6), 6: ('PV', 7), 7: ('OX', 0)}
    w3 = []
    for st in range(16):
        fr = w3free[st] if st < 8 else ('G3', st - 7)
        w3.append([dict(kind='w3', a=st, b=h, lds=w3pair[st % 8] * PAIR + h * 8192, free=idx[fr], need=idx[('G3', st)]) for h in range(2)])
    o3 = []
    for st in range(16):
        fr = ('OY', 0) if st < 4 else ('G3', st - 3)
        o3.append(dict(kind='o', a=st, b=0, lds=(st % 4) * 8192, free=idx[fr], need=idx[('G3', st)]))
    for st in range(8): U += w3[st]
    for st in range(4): U.append(o3[st])
    for n in range(1, 13):
        U.append(o3[n + 3])
        if n + 7 < 16: U += w3[n + 7]
    return steps, idx, U, kpair, vpair, w3pair

def budget(step):
    kind, n = step
    if kind == 'G1': return 3 if n < 16 else 6
    if kind == 'QX': return 99
    if kind == 'S': return 2
    if kind == 'PV': return 3
    if kind in ('EX', 'OX'): return 99
    if kind == 'OY': return 99
    if kind == 'G3': return 3
    return 0

def assign(steps, U):
    plan = [[] for _ in steps]
    ui = 0
    pre = []
    while ui < len(U) and len(pre) < OPT['limit'] and U[ui]['free'] == 0:
        pre.append(U[ui]); ui += 1
    for si, st in enumerate(steps):
        b = budget(st)
        while ui < len(U) and b > 0 and U[ui]['free'] <= si:
            plan[si].append(U[ui]); ui += 1; b -= 1
        while ui < len(U) and U[ui]['need'] <= si + 1:
            assert U[ui]['free'] <= si, (U[ui], st)
            plan[si].append(U[ui]); ui += 1
    assert ui == len(U), (ui, len(U))
    for si, us in enumerate(plan):
        for u in us: assert u['need'] > si, (u, steps[si])
    return pre, plan

def prologue(k, end):
    k.scmp("s_cmp_ge_u32", "s2", 256); k.branch("s_cbranch_scc1", end)
    stamp(k, 'a', 0)
    k.sload(S(4, 8), S(0, 2), 0)
    k.sload(S(12, 4), S(0, 2), 32)
    k.sload(S(16, 4), S(0, 2), 48)
    k.v("v_lshrrev_b32", V(2), 6, V(0))
    k.v("v_and_b32", V(1), 63, V(0))
    k.v("v_readfirstlane_b32", sW, V(2))
    k.s("s_and_b32", sT, "s2", 7)
    k.s("s_lshr_b32", sT2, "s2", 3)
    k.s("s_lshr_b32", sG, sT, 1)
    k.s("s_and_b32", sT, sT, 1); k.s("s_lshl_b32", sT, sT, 2)
    k.s("s_lshr_b32", sBP, sT2, 3); k.s("s_add_u32", sBP, sBP, sT)
    k.s("s_and_b32", sU, sT2, 7)
    k.s("s_lshl_b32", sL, sBP, 2); k.s("s_add_u32", sL, sL, sG); k.s("s_lshl_b32", sL, sL, 3); k.s("s_add_u32", sL, sL, sU)
    k.wait_raw("lgkmcnt(0)")

WSP = S(18, 2); DBG = S(16, 2)

def loader(k, steps, pre, plan):
    lane = V(1); t0, t1, t2, t3 = V(2), V(3), V(4), V(5)
    sLW = sA0
    k.s("s_sub_u32", sLW, sW, 4)
    k.s("s_lshl_b32", sT, sBP, 17); make_srd(k, srdX, S(4, 2), sT, 131072)
    k.s("s_lshl_b32", sT, sG, 3); k.s("s_add_u32", sT, sT, sU); k.s("s_lshl_b32", sT, sT, 8)
    k.s("s_sub_u32", sT2, 8388608, sT); make_srd(k, srdW1, S(10, 2), sT, sT2)
    vxd = [V(8), V(9)]; vw1 = [V(10), V(11)]; vkd = [V(12), V(13)]; vvd = V(14); vod = V(15); vw3 = [V(16), V(17)]
    for i in range(2):
        k.v("v_lshrrev_b32", t0, 3, lane)
        k.s("s_lshl_b32", sT, sLW, 4); k.s("s_add_u32", sT, sT, 8 * i)
        k.v("v_add_u32", t0, sT, t0)
        k.v("v_lshrrev_b32", t1, 1, t0); k.v("v_and_b32", t1, 7, t1)
        k.v("v_and_b32", t2, 7, lane); k.v("v_xor_b32", t1, t1, t2)
        k.v("v_lshlrev_b32", t1, 4, t1)
        k.v("v_lshl_add_u32", vxd[i], t0, 11, t1)
        if i: k.v("v_subrev_u32", vxd[i], 1024, vxd[i])
    k.v("v_lshrrev_b32", t0, 4, lane)
    k.v("v_and_b32", t1, 15, lane)
    k.v("v_lshlrev_b32", t2, 2, t0); k.v("v_xor_b32", t2, t2, t1); k.v("v_lshlrev_b32", t2, 4, t2)
    k.s("s_lshl_b32", sT, sLW, 3)
    k.v("v_add_u32", t3, sT, t0)
    k.v("v_lshl_add_u32", vw1[0], t3, 13, t2)
    k.v("v_add_u32", vw1[1], 4 * 8192 - 1024, vw1[0])
    k.s("s_lshl_b32", sM0, sLW, 11)
    def late_setup():
        k.v("v_lshl_add_u32", vw3[0], t3, 11, t2)
        k.v("v_add_u32", vw3[1], 4 * 2048 - 1024, vw3[0])
        k.v("v_lshl_add_u32", vvd, t3, 8, t2)
        for i in range(2):
            k.v("v_add_u32", V(6), 4 * i, t3); k.v("v_and_b32", V(6), 15, V(6)); k.v("v_xor_b32", V(6), V(6), t1)
            k.v("v_lshlrev_b32", V(6), 4, V(6))
            k.v("v_lshl_add_u32", vkd[i], t3, 8, V(6))
        k.s("s_lshr_b32", sT, sLW, 1); k.s("s_lshl_b32", sT, sT, 18)
        k.s("s_and_b32", sT2, sLW, 1); k.s("s_lshl_b32", sT2, sT2, 11); k.s("s_add_u32", sT, sT, sT2)
        k.v("v_lshl_add_u32", vod, lane, 4, sT)
        k.s("s_and_b32", sT, sU, 1); k.s("s_lshl_b32", sT2, sBP, 1); k.s("s_add_u32", sT, sT, sT2)
        k.s("s_lshl_b32", sT, sT, 2); k.s("s_add_u32", sT, sT, sG); k.s("s_lshl_b32", sT, sT, 17)
        make_srd(k, srdK, S(6, 2), sT, 131072); make_srd(k, srdV, S(8, 2), sT, 131072)
        k.s("s_lshl_b32", sT, sBP, 6); k.s("s_lshl_b32", sT2, sG, 3); k.s("s_add_u32", sT, sT, sT2); k.s("s_lshl_b32", sT, sT, 13)
        k.s("s_add_u32", sT, sT, WS_O); make_srd(k, srdO, WSP, sT, 327680)
        k.s("s_lshl_b32", sT, sG, 21); k.s("s_lshl_b32", sT2, sU, 8); k.s("s_add_u32", sT, sT, sT2)
        k.s("s_sub_u32", sT2, 8388608, sT); make_srd(k, srdW3, S(12, 2), sT, sT2)
    lim = OPT['limit']
    def issue(u, pace=True):
        tag = (u['kind'], u['a'], u['b'])
        if pace and len(k.vmq) > 2 * (lim - 1):
            n = 2 * (lim - 1)
            k.wait_raw(f"vmcnt({n})"); k.vmq = k.vmq[-n:]
        kind, a, b = tag
        if kind == 'x': so, regs_, srd, fl = a * 128, vxd, srdX, ""
        elif kind == 'w1': so, regs_, srd, fl = (64 * a + 32 * b) * 8192, vw1, srdW1, ""
        elif kind == 'k': so, regs_, srd, fl = b * 65536 + a * 8192, vkd, srdK, ""
        elif kind == 'v': so, regs_, srd, fl = b * 65536 + a * 8192, [vvd, vvd], srdV, ""
        elif kind == 'o': so, regs_, srd, fl = a * 4096, [vod, vod], srdO, "sc1"
        elif kind == 'w3': so, regs_, srd, fl = (64 * a + 32 * b) * 2048, vw3, srdW3, ""
        k.s("s_mov_b32", sOff, so)
        k.s("s_add_u32", "m0", sM0, u['lds'])
        for i in range(2): k.dma(regs_[i], srd, sOff, 1024 * i, tag, fl)
    for u in pre: issue(u, pace=False)
    late_setup()
    allunits = pre + [u for us in plan for u in us]
    last_need = max(u['need'] for u in allunits)
    for si, st in enumerate(steps):
        need = [(u['kind'], u['a'], u['b']) for u in allunits if u['need'] == si]
        need = [t for t in need if t in k.vmq]
        if need: k.wait(vm=need)
        k.barrier()
        if si == last_need: break
        for u in plan[si]: issue(u)
    return last_need

def flag_set(k, kind, vnonce, vzero):
    lab = k.newlabel("nofl")
    k.v("v_mov_b32", vnonce, sNonce); k.v("v_mov_b32", vzero, 0)
    k.scmp("s_cmp_lg_u32", sW, 0); k.branch("s_cbranch_scc1", lab)
    k.s("s_lshl_b32", sT, sL, 7); k.s("s_add_u32", sT, sT, kind * 32768)
    k.raw("s_mov_b64 exec, 1", w=["exec"])
    k.buf_store(vnonce, vzero, srdF, sT, 0, 'flag', "sc1")
    k.raw("s_mov_b64 exec, -1", w=["exec"])
    k.label(lab)
def poll(k, nl, voff, sbase, vnonce, vtmp):
    lp = k.newlabel("poll"); done = k.newlabel("pdone")
    k.raw(f"s_mov_b64 exec, {(1 << nl) - 1}", w=["exec"])
    k.s("s_mov_b32", sPoll, 0)
    k.label(lp)
    k.raw(f"buffer_load_dword {vtmp}, {voff}, {srdF}, {sbase} offen sc1", kind='vmem', w=[vtmp], r=[voff, srdF, sbase])
    k.wait_raw("vmcnt(0)")
    k.vcmp("v_cmp_ne_u32", "vcc", sNonce, vtmp)
    k.s("s_add_u32", sPoll, sPoll, 1)
    k.branch("s_cbranch_vccz", done)
    if OPT['sleep']: k.raw(f"s_sleep {OPT['sleep']}")
    k.scmp("s_cmp_lt_u32", sPoll, POLL_MAX); k.branch("s_cbranch_scc1", lp)
    k.label(done)
    k.raw("s_mov_b64 exec, -1", w=["exec"])
    k.vmq = []

def compute(k, steps, kpair, vpair, w3pair, last_loader_step):
    lane = V(1); vl16 = V(2)
    t = [V(3), V(4), V(5), V(6), V(7)]
    sRB, sCH = sA0, sA1
    k.s("s_and_b32", sRB, sW, 1); k.s("s_lshr_b32", sCH, sW, 1)
    k.v("v_lshlrev_b32", vl16, 4, lane)
    vnonce, vzero = V(60), V(61)
    k.s("s_mov_b32", sT, WS_F); make_srd(k, srdF, WSP, sT, (WS_E - WS_F) + 4096)
    k.v("v_mov_b32", vzero, 0)
    k.s("s_mov_b32", sTmp[0], WS_E - WS_F)
    k.buf_load(V(62), vzero, srdF, sTmp[0], 0, 'epoch', "sc1")
    vxr = [V(8 + s) for s in range(4)]; vwr = [V(12), V(13)]
    k.v("v_and_b32", t[0], 31, lane)
    k.s("s_lshl_b32", sT, sRB, 5); k.v("v_add_u32", t[0], sT, t[0])
    k.v("v_lshrrev_b32", t[1], 1, t[0]); k.v("v_and_b32", t[1], 7, t[1])
    k.v("v_lshrrev_b32", t[2], 5, lane); k.v("v_xor_b32", t[1], t[1], t[2])
    k.v("v_lshlrev_b32", t[0], 7, t[0])
    for s in range(4):
        k.v("v_xor_b32", t[3], 2 * s, t[1]); k.v("v_lshl_add_u32", vxr[s], t[3], 4, t[0])
    k.s("s_lshl_b32", sTmp[1], sCH, 3); k.s("s_add_u32", sTmp[2], sTmp[1], 4)
    tr_addr(k, vwr, lane, [sTmp[1], sTmp[2]], [2 * PAIR, 2 * PAIR], t)
    acc = [V(16, 16), V(32, 16)]
    for r in range(32): k.v("v_mov_b32", V(16 + r), 0)
    frB = lambda p, s: V(64 + p * 48 + s * 4, 4)
    frA = lambda p, tt, s: V(64 + p * 48 + 16 + (tt * 4 + s) * 4, 4)
    def g_reads(st, mode):
        p = st & 1; L = []
        for s in range(4):
            if mode == 1: L.append(lambda s=s: k.ds_read(frB(p, s), vxr[s], (st % 4) * 8192, ('r', mode, st)))
            else: L.append(lambda s=s: k.ds_read(frB(p, s), vor, (st % 4) * 8192 + 1024 * s, ('r', mode, st)))
            for tt in range(2):
                for rr in range(2):
                    if mode == 1:
                        reg, base = vwr[tt], (st % 4) * PAIR
                    else:
                        pr = w3pair[st % 8]; bank = 1 if pr >= 6 else 0
                        reg, base = vw3r[bank][tt], (pr - (6 if bank else 2)) * PAIR
                    L.append(lambda s=s, tt=tt, rr=rr, reg=reg, base=base: k.ds_read(frA(p, tt, s).sub(2 * rr, 2), reg, base + (16 * s + 4 * rr) * 256, ('r', mode, st), tr=True))
        return L
    def g_mfma(st):
        p = st & 1
        return [(lambda s=s, tt=tt: k.mfma(acc[tt], frA(p, tt, s), frB(p, s), acc[tt])) for s in range(4) for tt in range(2)]
    sHH, sKH = sA0, sA1
    vkr = [V(8 + s) for s in range(8)]; vvr = [V(16 + i) for i in range(4)]
    vmax = [V(20), V(21)]; vm, vmc = V(22), V(23); lacc = [V(24 + i) for i in range(4)]
    Sx = [V(128 + 16 * j, 16) for j in range(8)]
    Q = [V(96 + 4 * s, 4) for s in range(8)]
    KF = lambda p, s: V(32 + p * 32 + s * 4, 4)
    O = [V(64 + 16 * tt, 16) for tt in range(4)]
    VFsets = [[V(32 + 4 * tt, 4) for tt in range(4)], [V(48 + 4 * tt, 4) for tt in range(4)], [V(136, 4), V(140, 4), V(4, 4), V(28, 4)]]
    VF = lambda x, tt: VFsets[x % 3][tt]
    korg = [6 * PAIR]; vorg = [0]
    def kreads(j):
        return [(lambda s=s: k.ds_read(KF(j & 1, s), vkr[s], kpair[j] * PAIR - korg[0], ('r', 'k', j))) for s in range(8)]
    def smfma(j): return [(lambda s=s: k.mfma(Sx[j], KF(j & 1, s), Q[s], (Sx[j] if s else 0))) for s in range(8)]
    def maxops(j):
        L = []
        for q in range(8):
            a = vmax[q & 1]
            if j == 0 and q < 2: L.append(lambda q=q, a=a: k.v("v_max_f32", a, Sx[j][2 * q], Sx[j][2 * q + 1]))
            else: L.append(lambda q=q, a=a: k.v("v_max3_f32", a, Sx[j][2 * q], Sx[j][2 * q + 1], a))
        return L
    def vreads(x):
        i, ks = x >> 1, x & 1; L = []
        for tt in range(4):
            for rr in range(2):
                L.append(lambda tt=tt, rr=rr: k.ds_read(VF(x, tt).sub(2 * rr, 2), vvr[tt], vpair[i] * PAIR - vorg[0] + (16 * ks + 4 * rr) * 256, ('r', 'v', x), tr=True))
        return L
    def pvmfma(x):
        i, ks = x >> 1, x & 1
        return [(lambda tt=tt: k.mfma(O[tt], VF(x, tt), Sx[i].sub(4 * ks, 4), (O[tt] if x else 0))) for tt in range(4)]
    def softmax(i):
        L = []; s_ = Sx[i]
        for hf in range(2):
            rr_ = range(8 * hf, 8 * hf + 8)
            for r in rr_: L.append(lambda r=r: k.v("v_fma_f32", s_[r], s_[r], sC, "-" + str(vmc)))
            for r in rr_: L.append(lambda r=r: k.v("v_exp_f32", s_[r], s_[r]))
            for r in rr_:
                if i == 0 and r < 4: L.append(lambda r=r: k.v("v_mov_b32", lacc[r & 3], s_[r]))
                else: L.append(lambda r=r: k.v("v_add_f32", lacc[r & 3], lacc[r & 3], s_[r]))
            for q in range(4): L.append(lambda q=q, hf=hf: k.v("v_cvt_pk_bf16_f32", s_[4 * hf + q], s_[8 * hf + 2 * q], s_[8 * hf + 2 * q + 1]))
        return L
    sB, sBH = sTmp[3], sTmp[4]
    vw3r = [[V(8), V(9)], [V(10), V(11)]]; vor = V(12)
    for si, st in enumerate(steps):
        kind, n = st
        with_barrier = si <= last_loader_step
        if kind == 'G1':
            k.wait(lg='all')
            if n == 2:
                k.wait(vm='epoch'); k.v("v_readfirstlane_b32", sNonce, V(62)); k.s("s_add_u32", sNonce, sNonce, NONCE_C)
            k.barrier()
            if n == 0: stamp(k, 'c', 1)
            if n == 2:
                lab = k.newlabel("noat")
                k.scmp("s_cmp_lg_u32", sW, 0); k.branch("s_cbranch_scc1", lab)
                k.v("v_mov_b32", V(62), 1)
                k.raw("s_mov_b64 exec, 1", w=["exec"])
                k.vmem_raw(f"global_atomic_add v63, v61, v62, s[16:17] sc0 sc1", w=["v63"], r=["v61", "v62", "s[16:17]"], tag='atom')
                k.raw("s_mov_b64 exec, -1", w=["exec"])
                k.label(lab)
                k.vmq = []
            fill = g_reads(n, 1) if n < 16 else []
            if n > 0: interleave(k, g_mfma(n - 1), fill, front=0.4)
            else:
                for f in fill: f()
            if n == 16:
                stamp(k, 'c', 2)
                k.s("s_lshl_b32", sT, sBP, 1); k.s("s_add_u32", sT, sT, sRB); k.s("s_lshl_b32", sT, sT, 5)
                k.s("s_lshl_b32", sT2, sG, 3); k.s("s_add_u32", sT, sT, sT2); k.s("s_add_u32", sT, sT, sU)
                k.s("s_lshl_b32", sT, sT, 13); k.s("s_lshl_b32", sT2, sCH, 12); k.s("s_add_u32", sT, sT, sT2)
                k.s("s_mov_b32", sT2, WS_Q); make_srd(k, srdQ, WSP, sT2, 4 << 20)
                for tt in range(2):
                    for hf in range(2):
                        d = V(64 + (tt * 2 + hf) * 4, 4)
                        for q in range(4): k.v("v_cvt_pk_bf16_f32", d[q], acc[tt][8 * hf + 2 * q], acc[tt][8 * hf + 2 * q + 1])
                        k.buf_store(d, vl16, srdQ, sT, (tt * 2 + hf) * 1024, 'st', "sc1")
                k.v("v_and_b32", t[0], 31, lane)
                k.v("v_and_b32", t[1], 0x13, t[0])
                k.v("v_bfe_u32", t[2], t[0], 2, 1); k.v("v_lshl_or_b32", t[1], t[2], 3, t[1])
                k.v("v_bfe_u32", t[2], t[0], 3, 1); k.v("v_lshl_or_b32", t[1], t[2], 2, t[1])
                k.v("v_and_b32", t[2], 15, t[1])
                k.v("v_lshrrev_b32", t[3], 5, lane); k.v("v_xor_b32", t[2], t[2], t[3])
                k.s("s_lshl_b32", sTmp[5], sKH, 13)
                k.s("s_add_u32", sTmp[6], sTmp[5], korg[0])
                k.v("v_lshl_add_u32", t[1], t[1], 8, sTmp[6])
                for s in range(8):
                    k.v("v_xor_b32", t[3], 2 * s, t[2]); k.v("v_lshl_add_u32", vkr[s], t[3], 4, t[1])
                tr_addr(k, vvr, lane, [0, 4, 8, 12], [sTmp[5]] * 4, t)
                k.s("s_mov_b32", sC, f32bits(math.log2(math.e) / math.sqrt(128.0)))
                k.s("s_and_b32", sB, sU, 1); k.s("s_lshl_b32", sT, sBP, 1); k.s("s_add_u32", sB, sB, sT)
                k.s("s_and_b32", sT, sU, 6); k.s("s_lshl_b32", sT2, sG, 3); k.s("s_add_u32", sT, sT, sT2); k.s("s_add_u32", sT, sT, sHH)
                k.s("s_lshl_b32", sBH, sB, 5); k.s("s_add_u32", sBH, sBH, sT); k.s("s_lshl_b32", sBH, sBH, 13)
                k.wait_raw("vmcnt(0)"); k.vmq = []
                k.v("v_readfirstlane_b32", sAtom, V(63))
        elif kind == 'QX':
            k.barrier()
            stamp(k, 'c', 3)
            flag_set(k, 0, vnonce, vzero)
            k.s("s_xor_b32", sT, sL, 1); k.s("s_lshl_b32", sT, sT, 7)
            poll(k, 1, vzero, sT, vnonce, V(62))
            k.s("s_add_u32", sT, sBH, 4096)
            for s in range(8): k.buf_load(Q[s], vl16, srdQ, (sBH if s < 4 else sT), (s & 3) * 1024, 'q', "sc1")
            k.wait(vm='q')
            stamp(k, 'c', 4)
        elif kind == 'S':
            k.wait(lg='all'); k.barrier()
            if n == 4:
                for s in range(8): k.v("v_subrev_u32", vkr[s], 65536, vkr[s])
                korg[0] -= 65536
            fill = kreads(n)
            if n >= 2: fill = fill + maxops(n - 2)
            if n >= 1: interleave(k, smfma(n - 1), fill, front=0.2)
            else:
                for f in fill: f()
        elif kind == 'PV':
            k.wait(lg='all'); k.barrier()
            if n == 0:
                stamp(k, 'c', 5)
                fill = vreads(0) + vreads(1) + maxops(6)
                interleave(k, smfma(7), fill, front=0.2)
                for f in maxops(7): f()
                k.v("v_max_f32", vm, vmax[0], vmax[1])
                k.v("v_mov_b32", t[0], vm)
                k.v("v_permlane32_swap_b32", t[0], vm)
                k.v("v_max_f32", vm, vm, t[0])
                k.v("v_mul_f32", vmc, sC, vm)
                for f in softmax(0): f()
            else:
                if n == 2:
                    for tt in range(4): k.v("v_add_u32", vvr[tt], 6 * PAIR, vvr[tt])
                    vorg[0] = 6 * PAIR
                if n == 6:
                    for tt in range(4): k.v("v_subrev_u32", vvr[tt], 4 * PAIR, vvr[tt])
                    vorg[0] = 2 * PAIR
                sm = softmax(n) if n < 8 else []
                h1, h2 = sm[:len(sm) // 2], sm[len(sm) // 2:]
                r1 = vreads(2 * n) if n < 8 else []
                r2 = vreads(2 * n + 1) if n < 8 else []
                if n == 8:
                    def stats():
                        k.v("v_add_f32", lacc[0], lacc[0], lacc[1]); k.v("v_add_f32", lacc[2], lacc[2], lacc[3])
                        k.v("v_add_f32", lacc[0], lacc[0], lacc[2])
                        k.v("v_mov_b32", t[0], lacc[0])
                        k.v("v_permlane32_swap_b32", t[0], lacc[0])
                        k.v("v_add_f32", V(21), lacc[0], t[0])
                        k.v("v_mov_b32", V(20), vm)
                        k.s("s_lshl_b32", sT, sW, 9); k.s("s_add_u32", sT, sT, 3 * PAIR)
                        k.v("v_lshl_add_u32", V(16), lane, 3, sT)
                        k.ds_write(V(16), V(20, 2), 0, 'stw')
                    h2 = [stats]
                interleave(k, pvmfma(2 * n - 2), merge(r1, h1), front=0.1)
                interleave(k, pvmfma(2 * n - 1), merge(r2, h2), front=0.1)
                if n == 8:
                    k.s("s_lshl_b32", sT, sW, 13)
                    k.v("v_lshl_add_u32", V(17), lane, 4, sT)
                    l1 = k.newlabel("kh1"); lj = k.newlabel("join")
                    k.scmp("s_cmp_eq_u32", sKH, 1); k.branch("s_cbranch_scc1", l1)
                    k.nop(12)
                    for q in range(8): k.ds_write(V(17), V(96 + 4 * q, 4), q * 1024, 'xw')
                    for q in range(32): k.v("v_mov_b32", V(128 + q), V(64 + q))
                    k.branch("s_branch", lj)
                    k.label(l1); k.lgq = k.lgq[:-8]
                    k.nop(12)
                    for q in range(8): k.ds_write(V(17), V(64 + 4 * q, 4), q * 1024, 'xw')
                    for q in range(32): k.v("v_mov_b32", V(128 + q), V(96 + q))
                    k.label(lj)
        elif kind == 'EX':
            k.wait(lg='all'); k.barrier()
            stamp(k, 'c', 6)
            k.s("s_xor_b32", sT3, sW, 2)
            k.s("s_lshl_b32", sT, sT3, 9); k.s("s_add_u32", sT, sT, 3 * PAIR)
            k.v("v_lshl_add_u32", V(16), lane, 3, sT)
            k.ds_read(V(22, 2), V(16), 0, 'str')
            k.s("s_lshl_b32", sT, sT3, 13)
            k.v("v_lshl_add_u32", V(17), lane, 4, sT)
            for q in range(8): k.ds_read(V(160 + 4 * q, 4), V(17), q * 1024, 'xr')
            k.wait(lg='str')
            k.v("v_max_f32", V(24), V(20), V(22))
            k.v("v_sub_f32", V(25), V(20), V(24)); k.v("v_sub_f32", V(26), V(22), V(24))
            k.v("v_mul_f32", V(25), sC, V(25)); k.v("v_mul_f32", V(26), sC, V(26))
            k.v("v_exp_f32", V(25), V(25)); k.v("v_exp_f32", V(26), V(26))
            k.v("v_mul_f32", V(27), V(25), V(21)); k.v("v_fma_f32", V(27), V(26), V(23), V(27))
            k.v("v_rcp_f32", V(27), V(27))
            k.v("v_mul_f32", V(25), V(25), V(27)); k.v("v_mul_f32", V(26), V(26), V(27))
            for q in range(32): k.v("v_mul_f32", V(128 + q), V(128 + q), V(25))
            k.wait(lg='all')
            for q in range(32): k.v("v_fma_f32", V(128 + q), V(160 + q), V(26), V(128 + q))
            k.s("s_mov_b32", sT2, WS_O); make_srd(k, srdO, WSP, sT2, 4 << 20)
            k.s("s_lshl_b32", sT, sKH, 12); k.s("s_add_u32", sT, sT, sBH)
            for fq in range(4):
                d = V(64 + 4 * fq, 4)
                for q in range(4): k.v("v_cvt_pk_bf16_f32", d[q], V(128 + 8 * fq + 2 * q), V(128 + 8 * fq + 2 * q + 1))
                k.buf_store(d, vl16, srdO, sT, fq * 1024, 'st', "sc1")
            k.s("s_lshl_b32", sTmp[1], sCH, 3); k.s("s_add_u32", sTmp[2], sTmp[1], 4)
            tr_addr(k, vw3r[0], lane, [sTmp[1], sTmp[2]], [2 * PAIR, 2 * PAIR], t)
            for tt in range(2): k.v("v_add_u32", vw3r[1][tt], 4 * PAIR, vw3r[0][tt])
            k.s("s_lshl_b32", sT, sRB, 12); k.v("v_lshl_add_u32", vor, lane, 4, sT)
            for r in range(32): k.v("v_mov_b32", V(16 + r), 0)
            k.wait_raw("vmcnt(0)"); k.vmq = []
        elif kind == 'OX':
            k.barrier()
            stamp(k, 'c', 7)
            flag_set(k, 1, vnonce, vzero)
            lab = k.newlabel("nopoll")
            k.scmp("s_cmp_lg_u32", sW, 0); k.branch("s_cbranch_scc1", lab)
            k.s("s_and_b32", sT, sL, 0xf8); k.s("s_lshl_b32", sT, sT, 7); k.s("s_add_u32", sT, sT, 32768)
            k.v("v_lshlrev_b32", V(62), 7, lane)
            poll(k, 8, V(62), sT, vnonce, V(3))
            k.label(lab)
        elif kind == 'OY':
            k.barrier()
        elif kind == 'G3':
            k.wait(lg='all')
            if with_barrier: k.barrier()
            if n == 0: stamp(k, 'c', 8)
            fill = g_reads(n, 3) if n < 16 else []
            if n > 0: interleave(k, g_mfma(n - 1), fill, front=0.4)
            else:
                for f in fill: f()
    k.s("s_lshl_b32", sT, sBP, 3); k.s("s_add_u32", sT, sT, sU); k.s("s_lshl_b32", sT, sT, 17)
    k.s("s_add_u32", sT, sT, WS_P); make_srd(k, srdP, WSP, sT, 131072)
    k.s("s_lshl_b32", sTmp[0], sG, 15); k.s("s_lshl_b32", sT, sW, 11); k.s("s_add_u32", sTmp[0], sTmp[0], sT)
    keep = V(64, 8)
    labs = [k.newlabel(f"g{g}") for g in range(4)]; lj = k.newlabel("gjoin")
    for g in range(1, 4):
        k.scmp("s_cmp_eq_u32", sG, g); k.branch("s_cbranch_scc1", labs[g])
    q0 = list(k.vmq)
    for g in range(4):
        k.label(labs[g]); k.vmq = list(q0)
        k.nop(12)
        for qd in range(4):
            tt, hf = qd >> 1, qd & 1
            if qd == g:
                for r in range(8): k.v("v_mov_b32", keep[r], acc[tt][8 * hf + r])
            else:
                k.s("s_add_u32", sT, sTmp[0], qd * 8192)
                for q in range(2): k.buf_store(acc[tt].sub(8 * hf + 4 * q, 4), vl16, srdP, sT, q * 1024, 'st', "sc1")
        if g < 3: k.branch("s_branch", lj)
    k.label(lj)
    k.s("s_lshl_b32", sT, sBP, 1); k.s("s_add_u32", sT, sT, sRB); k.s("s_lshl_b32", sTmp[5], sT, 16)
    k.s("s_lshl_b32", sT2, sU, 8); k.s("s_add_u32", sTmp[5], sTmp[5], sT2)
    k.s("s_lshl_b32", sT2, sCH, 7); k.s("s_add_u32", sTmp[5], sTmp[5], sT2)
    k.s("s_lshl_b32", sT2, sG, 5); k.s("s_add_u32", sTmp[5], sTmp[5], sT2)
    k.v("v_and_b32", V(3), 31, lane); k.v("v_lshlrev_b32", V(3), 11, V(3))
    k.v("v_lshrrev_b32", V(4), 5, lane); k.v("v_lshl_add_u32", V(3), V(4), 4, V(3))
    make_srd(k, srdOut, S(14, 2), None, 1048576)
    k.wait_raw("vmcnt(0)"); k.vmq = []
    k.barrier()
    stamp(k, 'c', 9) if False else None
    flag_set(k, 2, vnonce, vzero)
    k.s("s_lshl_b32", sT, sBP, 5); k.s("s_add_u32", sT, sT, sU); k.s("s_lshl_b32", sT, sT, 7); k.s("s_add_u32", sT, sT, 65536)
    k.v("v_lshlrev_b32", V(62), 10, lane)
    poll(k, 4, V(62), sT, vnonce, V(5))
    for d in range(1, 4):
        k.s("s_add_u32", sT, sG, d); k.s("s_and_b32", sT, sT, 3); k.s("s_lshl_b32", sT, sT, 15)
        k.s("s_lshl_b32", sT2, sG, 13); k.s("s_add_u32", sT, sT, sT2)
        k.s("s_lshl_b32", sT2, sW, 11); k.s("s_add_u32", sTmp[d], sT, sT2)
        for q in range(2): k.buf_load(V(72 + (d - 1) * 8 + q * 4, 4), vl16, srdP, sTmp[d], q * 1024, 'pl', "sc1")
    k.wait(vm='all')
    for r in range(8):
        k.v("v_add_f32", keep[r], keep[r], V(72 + r)); k.v("v_add_f32", V(80 + r), V(80 + r), V(88 + r))
    for r in range(8): k.v("v_add_f32", keep[r], keep[r], V(80 + r))
    for q in range(4): k.v("v_cvt_pk_bf16_f32", V(8 + q), keep[2 * q], keep[2 * q + 1])
    k.buf_store(V(8, 4), V(3), srdOut, sTmp[5], 0, 'st')
    lab = k.newlabel("noep")
    k.scmp("s_cmp_lg_u32", sW, 0); k.branch("s_cbranch_scc1", lab)
    k.scmp("s_cmp_lg_u32", sAtom, 255); k.branch("s_cbranch_scc1", lab)
    k.v("v_mov_b32", vnonce, sNonce); k.v("v_mov_b32", vzero, 0)
    k.s("s_mov_b32", sT, WS_E - WS_F)
    k.raw("s_mov_b64 exec, 1", w=["exec"])
    k.buf_store(vnonce, vzero, srdF, sT, 0, 'ep', "sc1")
    k.raw("s_mov_b64 exec, -1", w=["exec"])
    k.label(lab)
    if OPT['stamp']:
        k.wait_raw("vmcnt(0)")
        stamp(k, 'c', 9) if False else None
        k.raw("s_memrealtime s[74:75]", kind='smem', w=["s[74:75]"])
        k.wait_raw("lgkmcnt(0)")
        lab = k.newlabel("nost")
        k.scmp("s_cmp_lg_u32", sW, 0); k.branch("s_cbranch_scc1", lab)
        k.s("s_lshl_b32", sT, "s2", 6); k.s("s_add_u32", sT, sT, WS_STAMP)
        k.s("s_add_u32", S(18), S(18), sT); k.s("s_addc_u32", S(19), S(19), 0)
        for i in range(9): k.v("v_mov_b32", V(64 + i), S(STAMP0 + 2 * i))
        k.v("v_mov_b32", V(64 + 9), S(74))
        k.v("v_mov_b32", V(64 + 10), sPoll); k.v("v_mov_b32", V(64 + 11), 0)
        k.raw("s_mov_b64 exec, 1", w=["exec"])
        for q in range(3):
            k.vmem_raw(f"global_store_dwordx4 v61, v[{64 + 4 * q}:{67 + 4 * q}], s[18:19] offset:{16 * q}", r=["v61"], tag='x')
        k.raw("s_mov_b64 exec, -1", w=["exec"])
        k.label(lab)

def build():
    steps, idx, U, kpair, vpair, w3pair = build_schedule()
    pre, plan = assign(steps, U)
    k = Kernel(KNAME); end = KNAME + "_end"
    prologue(k, end)
    labL = k.newlabel("loader")
    k.scmp("s_cmp_ge_u32", sW, 4); k.branch("s_cbranch_scc1", labL)
    if OPT['prio_c']: k.raw(f"s_setprio {OPT['prio_c']}")
    allunits = pre + [u for us in plan for u in us]
    last_need = max(u['need'] for u in allunits)
    compute(k, steps, kpair, vpair, w3pair, last_need)
    k.raw("s_endpgm")
    k.label(labL); k.vmq = []; k.lgq = []
    if OPT['prio_l']: k.raw(f"s_setprio {OPT['prio_l']}")
    loader(k, steps, pre, plan)
    k.label(end); k.raw("s_endpgm")
    return k, steps, pre, plan

def main(path):
    k, steps, pre, plan = build()
    hdr = open("standalone__gqa_block_cached__near_ridge.s.ref").read().split("; Override")[0]
    hdr += "; @launch grid=(256,1,1) block=(512,1,1) lds=163840\n"
    src = hdr + HEAD + kernel_text(k, 256, 256, sgpr=102)
    open(path, "w").write(src)
    if "-v" in sys.argv:
        print("pre:", [(u['kind'], u['a'], u['b']) for u in pre])
        for st, us in zip(steps, plan): print(st, [(u['kind'], u['a'], u['b']) for u in us])

if __name__ == "__main__":
    args = [a for a in sys.argv[1:] if not a.startswith("-")]
    for a in sys.argv[1:]:
        if a == "--stamp": OPT['stamp'] = True
        elif a.startswith("--") and "=" in a:
            kk, vv = a[2:].split("="); OPT[kk] = int(vv)
    main(args[0] if args else "v2.s")
```
